```python
import torch

def _softmax(x, axis=-1):
    return torch.softmax(x, dim=axis)
def _gelu(x):
    return torch.nn.functional.gelu(x, approximate="tanh")
def _silu(x):
    return torch.nn.functional.silu(x)
def _sigmoid(x):
    return torch.sigmoid(x)
def _layernorm(x, axis=-1, eps=1e-5):
    m = x.mean(dim=axis, keepdim=True)
    v = x.var(dim=axis, keepdim=True, unbiased=False)
    return (x - m) / torch.sqrt(v + eps)
def _scatter_add(tgt, idx, src, axis=0):
    return tgt.clone().index_add_(axis, idx, src)
def _segment_sum(src, seg, n):
    out = torch.zeros((n,) + src.shape[1:], dtype=src.dtype)
    return out.index_add_(0, seg, src)
def _pad(x, pw):
    flat = tuple(v for pair in reversed(pw) for v in pair)
    return torch.nn.functional.pad(x, flat)

kernel_name = 'standalone__mha_block_cached__near_ridge'

def setup_inputs():

    _w = (lambda a: (lambda t: t.to(torch.bfloat16) if t.is_floating_point() else t)(torch.as_tensor(a)))
    B, Sq, D = 32, 32, 448
    H, Sk, Dh = 16, 32, 256
    return {
        "x": _w((lambda *s: torch.randn(*s, dtype=torch.bfloat16) * 0.8)(B, Sq, D)),
        "k_cache": _w((lambda *s: torch.randn(*s, dtype=torch.bfloat16) * 0.8)(B, H, Sk, Dh)),
        "v_cache": _w((lambda *s: torch.randn(*s, dtype=torch.bfloat16) * 0.05)(B, H, Sk, Dh)),
        "wq": _w((lambda *s: torch.randn(*s, dtype=torch.bfloat16) * 0.8)(D, H * Dh) * (D ** -0.5)),
        "wo": _w((lambda *s: torch.randn(*s, dtype=torch.bfloat16) * 0.05)(H * Dh, D) * ((H * Dh) ** -0.5)),
    }

def reference(x, k_cache, v_cache, wq, wo):
    B, Sq, D = x.shape
    H, Dh = 16, 256
    q = (lambda x, *d: x.permute(*d))((x @ wq).reshape(B, Sq, H, Dh), 0, 2, 1, 3)
    scores = torch.einsum("bhqd,bhkd->bhqk", q, k_cache) * (Dh ** -0.5)
    p = _softmax(scores, axis=-1)
    o = torch.einsum("bhqk,bhkd->bhqd", p, v_cache)
    return (lambda x, *d: x.permute(*d))(o, 0, 2, 1, 3).reshape(B, Sq, H * Dh) @ wo
```

```python
NAME = "standalone__mha_block_cached__near_ridge"

HEADER = """; Kernarg layout for this problem (64 bytes, ptrs only, base s[0:1]):
"""

SZ_X = 32 * 32 * 448 * 2
SZ_KV = 32 * 16 * 32 * 256 * 2
SZ_W = 448 * 4096 * 2
SZ_OUT = SZ_X


class Asm:
    def __init__(self):
        self.l = []

    def __call__(self, s):
        for ln in s.split("\n"):
            ln = ln.strip()
            if ln:
                self.l.append("    " + ln)

    def label(self, s):
        self.l.append(s + ":")

    def raw(self, s):
        self.l.append(s)

    def text(self):
        return "\n".join(self.l) + "\n"


def v(i, n=1):
    return f"v{i}" if n == 1 else f"v[{i}:{i+n-1}]"


def a(i, n=1):
    return f"a{i}" if n == 1 else f"a[{i}:{i+n-1}]"


def s(i, n=1):
    return f"s{i}" if n == 1 else f"s[{i}:{i+n-1}]"


def srd(A, dst, ptr, nbytes):
    A(f"s_mov_b32 s{dst}, s{ptr}")
    A(f"s_and_b32 s{dst+1}, s{ptr+1}, 0xffff")
    A(f"s_mov_b32 s{dst+2}, {nbytes}")
    A(f"s_mov_b32 s{dst+3}, 0x00020000")


def kernel_open(A, name):
    A.raw(f".globl {name}")
    A.raw(".p2align 8")
    A.raw(f".type {name},@function")
    A.label(name)


def descriptor(name, vgpr, accum, sgpr=102):
    return f""".amdhsa_kernel {name}
  .amdhsa_next_free_vgpr {vgpr}
  .amdhsa_next_free_sgpr {sgpr}
  .amdhsa_accum_offset {accum}
  .amdhsa_group_segment_fixed_size 0
  .amdhsa_kernarg_size 64
  .amdhsa_user_sgpr_count 2
  .amdhsa_user_sgpr_kernarg_segment_ptr 1
  .amdhsa_system_sgpr_workgroup_id_x 1
.end_amdhsa_kernel
"""
```

```python
import sys
from common import *

MF = "v_mfma_f32_32x32x16_bf16"
CS = 0.0625 * 1.4426950408889634


class VM:
    def __init__(self):
        self.n = 0
        self.last = {}
    def issue(self, key, cnt):
        self.n += cnt
        self.last[key] = self.n
    def wait(self, key):
        return self.n - self.last[key]


def interleave(A, mfmas, fillers, after):
    f = list(fillers)
    for i, m in enumerate(mfmas):
        A(m)
        k = after[i] if i < len(after) else 0
        for _ in range(k):
            if f:
                A(f.pop(0))
    for x in f:
        A(x)


def lane_consts(A):
    A("v_lshrrev_b32 v1, 6, v0")
    A("v_and_b32 v0, 63, v0")
    A("v_readfirstlane_b32 s24, v1")
    A("v_lshrrev_b32 v2, 3, v0")
    A("v_lshrrev_b32 v1, 4, v0")
    A("v_xor_b32 v3, v0, v1")
    A("v_and_b32 v3, 7, v3")
    A("v_lshlrev_b32 v3, 4, v3")


def voffs(A, dst, pitch_expr_reg, swz_reg, steps, xor_odd):
    A(f"v_add_u32 v{dst}, v{pitch_expr_reg}, v{swz_reg}")
    if xor_odd:
        A(f"v_xor_b32 v{dst+1}, 64, v{dst}")
    else:
        A(f"v_mov_b32 v{dst+1}, v{dst}")
    A(f"v_add_u32 v{dst+2}, {steps[2]}, v{dst}")
    A(f"v_add_u32 v{dst+3}, {steps[3]}, v{dst+1}")
    A(f"v_add_u32 v{dst+1}, {steps[1]}, v{dst+1}")


def read_addrs(A, dst, tmp):
    A(f"v_lshrrev_b32 v{tmp}, 1, v0")
    A(f"v_and_b32 v{tmp}, 7, v{tmp}")
    A(f"v_lshrrev_b32 v{dst}, 5, v0")
    A(f"v_xor_b32 v{tmp}, v{tmp}, v{dst}")
    A(f"v_lshlrev_b32 v{tmp}, 4, v{tmp}")
    A(f"v_and_b32 v{dst}, 31, v0")
    A(f"v_lshlrev_b32 v{dst}, 7, v{dst}")
    A(f"v_add_u32 v{dst}, v{dst}, v{tmp}")
    for k in range(1, 4):
        A(f"v_xor_b32 v{dst+k}, {32*k}, v{dst}")


def dma(vo, srdreg, soff, m0src):
    L = [f"s_mov_b32 m0, {m0src}"]
    L.append("s_nop 0")
    for i in range(4):
        off = f" offset:{1024*i}" if i else ""
        L.append(f"buffer_load_dwordx4 v{vo+i}, s[{srdreg}:{srdreg+3}], {soff} offen{off} lds")
    return L


def phase1(A, LA=4):
    VK, VX, VW, RA, RK = 4, 8, 12, 16, 20
    AS = [24, 40]
    XF = 56
    ACC = [88, 120]
    KW = 152
    SA = 168
    SX, SK, SW, SWS = 8, 12, 16, 20
    A("s_cmp_ge_u32 s2, 256")
    A("s_cbranch_scc1 p1_end")
    A("s_load_dwordx4 s[4:7], s[0:1], 0")
    A("s_load_dwordx2 s[28:29], s[0:1], 24")
    A("s_load_dwordx2 s[30:31], s[0:1], 56")
    lane_consts(A)
    A("s_and_b32 s25, s2, 7")
    A("s_lshl_b32 s25, s25, 1")
    A("s_bfe_u32 s3, s2, 0x10003")
    A("s_add_u32 s25, s25, s3")
    A("s_lshr_b32 s26, s2, 4")
    A("v_lshlrev_b32 v1, 9, v2")
    voffs(A, VK, 1, 3, [0, 3072, 6144, 9216], True)
    A("v_lshrrev_b32 v1, 2, v2")
    A("v_lshlrev_b32 v1, 3, v1")
    A(f"v_and_b32 v{VW}, 3, v2")
    A(f"v_add_u32 v1, v1, v{VW}")
    A("v_lshlrev_b32 v1, 13, v1")
    voffs(A, VW, 1, 3, [0, 4*8192-1024, 16*8192-2048, 20*8192-3072], True)
    A("v_mul_u32_u24 v1, 896, v2")
    voffs(A, VX, 1, 3, [0, 6144, 12288, 18432], True)
    A("s_lshr_b32 s3, s24, 1")
    A("s_lshl_b32 s32, s26, 1")
    A("s_add_u32 s32, s32, s3")
    A("s_lshl_b32 s32, s32, 4")
    A("s_add_u32 s32, s32, s25")
    A("s_lshl_b32 s32, s32, 14")
    A("s_and_b32 s3, s24, 1")
    A("s_lshl_b32 s3, s3, 8")
    A("s_add_u32 s32, s32, s3")
    A("s_lshl_b32 s33, s24, 13")
    A("s_lshl_b32 s34, s24, 20")
    A("s_lshl_b32 s3, s25, 9")
    A("s_add_u32 s34, s34, s3")
    A("s_mul_i32 s35, s26, 57344")
    A("s_lshl_b32 s3, s24, 8")
    A("s_add_u32 s35, s35, s3")
    A("s_lshl_b32 s36, s24, 15")
    A("s_add_u32 s36, s36, 32768")
    A("s_waitcnt lgkmcnt(0)")
    srd(A, SK, 6, SZ_KV)
    srd(A, SW, 28, SZ_W)
    srd(A, SX, 4, SZ_X)
    srd(A, SWS, 30, 1 << 20)
    for ln in dma(VK, SK, "s32", "s33"): A(ln)
    A("s_add_u32 s32, s32, 128")
    A("s_add_u32 s33, s33, 4096")
    for ln in dma(VK, SK, "s32", "s33"): A(ln)
    read_addrs(A, RK, 1)
    for k in range(4):
        A(f"v_add_u32 v{RA+k}, s36, v{RK+k}")
    A("s_cmp_eq_u32 s24, 3")
    A("s_cbranch_scc1 p1_w3")

    def body(nt):
        vm = VM()
        vm.issue("K", 8)
        stream = []
        for t in range(nt):
            stream += [("W", t, q) for q in range(4)]
            if t % 2 == 0:
                stream += [("X", t // 2, 0), ("X", t // 2, 1)]
        issued = [0]

        def issue_chunk():
            j = issued[0]
            c = stream[j]
            L = [f"s_add_u32 s37, s36, {(j % 8) * 4096}"]
            if c[0] == "W":
                L.append(f"s_add_u32 s38, s34, {c[1]*32*8192 + c[2]*128}")
                L += dma(VW, SW, "s38", "s37")
            else:
                L.append(f"s_add_u32 s38, s35, {c[2]*28672 + c[1]*128}")
                L += dma(VX, SX, "s38", "s37")
            vm.issue(j, 4)
            issued[0] += 1
            return L

        def reads(j):
            c = stream[j]
            if c[0] == "W":
                wi = c[1] * 4 + c[2]
                dst = AS[wi & 1]
            else:
                dst = XF + c[2] * 16
            return [f"ds_read_b128 v[{dst+4*k}:{dst+4*k+3}], v{RA+k} offset:{(j % 8)*4096}" for k in range(4)]

        for _ in range(LA + 1):
            for ln in issue_chunk(): A(ln)
        A(f"s_waitcnt vmcnt({vm.wait('K')})")
        A("s_barrier")
        for b in range(2):
            for dq in range(4):
                for k in range(4):
                    d = (b * 16 + dq * 4 + k) * 4
                    A(f"ds_read_b128 a[{d}:{d+3}], v{RK+k} offset:{(b*4+dq)*4096}")
        A(f"s_waitcnt vmcnt({vm.wait(0)})")
        for ln in reads(0): A(ln)
        A("s_waitcnt lgkmcnt(0)")
        A("s_barrier")
        rd = 1
        widx = [j for j, c in enumerate(stream) if c[0] == "W"]
        for n, j in enumerate(widx):
            t, q = stream[j][1], stream[j][2]
            aset = AS[n & 1]
            acc = ACC[t & 1]
            if n > 0:
                A("s_waitcnt lgkmcnt(0)")
            mf = []
            for k in range(4):
                for b in range(2):
                    kf = (b * 16 + q * 4 + k) * 4
                    c = "0" if (q == 0 and k == 0) else f"v[{acc+16*b}:{acc+16*b+15}]"
                    mf.append(f"{MF} v[{acc+16*b}:{acc+16*b+15}], v[{aset+4*k}:{aset+4*k+3}], a[{kf}:{kf+3}], {c}")
            fill = []
            nxt = widx[n + 1] if n + 1 < len(widx) else None
            tgt = (nxt if nxt is not None else rd) + LA
            while issued[0] <= min(tgt, len(stream) - 1) and issued[0] < rd + 8:
                fill += issue_chunk()
            n_dma = len(fill)
            if nxt is not None:
                fill.append(f"s_waitcnt vmcnt({vm.wait(nxt)})")
                while rd <= nxt:
                    fill += reads(rd)
                    rd += 1
            extra = []
            if t > 0 and q == 1:
                pacc = ACC[(t - 1) & 1]
                for i in range(16):
                    extra.append(f"v_cvt_pk_bf16_f32 v{KW+i}, v{pacc+2*i}, v{pacc+2*i+1}")
            if t > 0 and q == 2:
                mf += smfma(t - 1)
            after = [n_dma, 0, len(fill) - n_dma] + [4, 4, 4, 4] + [0] * 8
            interleave(A, mf, fill + extra, after)
        t = nt - 1
        pacc = ACC[t & 1]
        A("s_nop 11")
        for i in range(16):
            A(f"v_cvt_pk_bf16_f32 v{KW+i}, v{pacc+2*i}, v{pacc+2*i+1}")
        A("s_nop 1")
        for ln in smfma(t): A(ln)

    def smfma(t):
        L = []
        for tp in range(2):
            for b in range(2):
                xf = XF + b * 16 + ((t & 1) * 2 + tp) * 4
                kw = KW + b * 8 + tp * 4
                c = "0" if (t == 0 and tp == 0) else f"v[{SA+16*b}:{SA+16*b+15}]"
                L.append(f"{MF} v[{SA+16*b}:{SA+16*b+15}], v[{kw}:{kw+3}], v[{xf}:{xf+3}], {c}")
        return L

    body(4)
    A("s_branch p1_red")
    A.label("p1_w3")
    body(2)
    A.label("p1_red")
    A("v_lshlrev_b32 v1, 4, v0")
    A("s_lshl_b32 s3, s24, 13")
    A("v_add_u32 v2, s3, v1")
    A("s_nop 10")
    for i in range(8):
        A(f"ds_write_b128 v2, v[{SA+4*i}:{SA+4*i+3}] offset:{i*1024}")
    A("s_waitcnt lgkmcnt(0)")
    A("s_barrier")
    A("s_cmp_ge_u32 s24, 2")
    A("s_cbranch_scc1 p1_end")
    A("s_lshl_b32 s3, s24, 12")
    A("v_add_u32 v2, s3, v1")
    T = 88
    for w in range(4):
        for i in range(4):
            A(f"ds_read_b128 v[{T+16*w+4*i}:{T+16*w+4*i+3}], v2 offset:{w*8192+i*1024}")
    A("s_lshl_b32 s3, s26, 1")
    A("s_add_u32 s3, s3, s24")
    A("s_lshl_b32 s3, s3, 4")
    A("s_add_u32 s3, s3, s25")
    A("s_lshl_b32 s3, s3, 11")
    import struct
    cs = struct.unpack("<I", struct.pack("<f", CS))[0]
    A(f"s_mov_b32 s37, {hex(cs)}")
    A("s_waitcnt lgkmcnt(8)")
    for i in range(16):
        A(f"v_add_f32 v{T+i}, v{T+i}, v{T+16+i}")
    A("s_waitcnt lgkmcnt(0)")
    for i in range(16):
        A(f"v_add_f32 v{T+32+i}, v{T+32+i}, v{T+48+i}")
    for i in range(16):
        A(f"v_add_f32 v{T+i}, v{T+i}, v{T+32+i}")
    M = T + 16
    A(f"v_max3_f32 v{M}, v{T}, v{T+1}, v{T+2}")
    for i in range(3, 15, 2):
        A(f"v_max3_f32 v{M}, v{M}, v{T+i}, v{T+i+1}")
    A(f"v_max_f32 v{M}, v{M}, v{T+15}")
    A(f"v_mov_b32 v{M+1}, v{M}")
    A("s_nop 1")
    A(f"v_permlane32_swap_b32 v{M}, v{M+1}")
    A("s_nop 1")
    A(f"v_max_f32 v{M}, v{M}, v{M+1}")
    A(f"v_mul_f32 v{M}, s37, v{M}")
    for i in range(16):
        A(f"v_fma_f32 v{T+i}, v{T+i}, s37, -v{M}")
    for i in range(16):
        A(f"v_exp_f32 v{T+i}, v{T+i}")
    A("s_nop 0")
    for i in range(8):
        A(f"v_add_f32 v{M+2+i}, v{T+2*i}, v{T+2*i+1}")
    for i in range(4):
        A(f"v_add_f32 v{M+2+i}, v{M+2+i}, v{M+6+i}")
    A(f"v_add_f32 v{M+2}, v{M+2}, v{M+4}")
    A(f"v_add_f32 v{M+3}, v{M+3}, v{M+5}")
    A(f"v_add_f32 v{M}, v{M+2}, v{M+3}")
    A(f"v_mov_b32 v{M+1}, v{M}")
    A("s_nop 1")
    A(f"v_permlane32_swap_b32 v{M}, v{M+1}")
    A("s_nop 1")
    A(f"v_add_f32 v{M}, v{M}, v{M+1}")
    A(f"v_rcp_f32 v{M}, v{M}")
    A("s_nop 0")
    for i in range(16):
        A(f"v_mul_f32 v{T+i}, v{T+i}, v{M}")
    for i in range(8):
        A(f"v_cvt_pk_bf16_f32 v{T+32+i}, v{T+2*i}, v{T+2*i+1}")
    A(f"buffer_store_dwordx4 v[{T+32}:{T+35}], v1, s[{SWS}:{SWS+3}], s3 offen")
    A(f"buffer_store_dwordx4 v[{T+36}:{T+39}], v1, s[{SWS}:{SWS+3}], s3 offen offset:1024")
    A.label("p1_end")
    A("s_endpgm")


def phase2(A, LAP=2):
    VV, VO, RA, RT = 4, 8, 12, 16
    PF = 20
    AS = [52, 68]
    BS = [84, 116]
    ACC = [148, 180]
    VB = 212
    SV, SO, SWS, SOUT = 8, 12, 16, 20
    NS = 9
    A("s_cmp_ge_u32 s2, 224")
    A("s_cbranch_scc1 p2_end")
    A("s_load_dwordx2 s[4:5], s[0:1], 16")
    A("s_load_dwordx4 s[28:31], s[0:1], 32")
    A("s_load_dwordx2 s[6:7], s[0:1], 56")
    lane_consts(A)
    A("s_lshr_b32 s3, s2, 3")
    A("s_mul_i32 s26, s3, 37")
    A("s_lshr_b32 s26, s26, 8")
    A("s_mul_i32 s25, s26, 7")
    A("s_sub_u32 s25, s3, s25")
    A("s_and_b32 s3, s2, 7")
    A("s_lshl_b32 s3, s3, 2")
    A("s_add_u32 s26, s26, s3")
    A("v_lshlrev_b32 v1, 9, v2")
    voffs(A, VV, 1, 3, [0, 3072, 6144, 9216], True)
    A("v_lshlrev_b32 v3, 2, v0")
    A("v_and_b32 v3, 64, v3")
    A("v_and_b32 v1, 7, v0")
    A("v_lshlrev_b32 v1, 4, v1")
    A("v_xor_b32 v3, v3, v1")
    A("v_mul_u32_u24 v1, 896, v2")
    voffs(A, VO, 1, 3, [0, 6144, 12288, 18432], False)
    A("s_lshl_b32 s32, s26, 2")
    A("s_add_u32 s32, s32, s24")
    A("s_lshl_b32 s34, s32, 13")
    A("s_lshl_b32 s32, s32, 16")
    A("s_mul_i32 s33, s24, 917504")
    A("s_lshl_b32 s3, s25, 7")
    A("s_add_u32 s33, s33, s3")
    A("s_mul_i32 s36, s24, 40960")
    A("s_waitcnt lgkmcnt(0)")
    srd(A, SV, 4, SZ_KV)
    srd(A, SO, 28, SZ_W)
    srd(A, SWS, 6, 1 << 20)
    srd(A, SOUT, 30, SZ_OUT)
    vm = VM()
    stream = []
    for hh in range(4):
        for q in range(4):
            stream += [("V", hh, q), ("O", hh, 2 * q), ("O", hh, 2 * q + 1)]
    issued = [0]

    def issue_chunk():
        j = issued[0]
        c = stream[j]
        L = [f"s_add_u32 s37, s36, {(j % NS) * 4096}"]
        if c[0] == "V":
            L.append(f"s_add_u32 s38, s32, {c[1]*16384 + c[2]*128}")
            L += dma(VV, SV, "s38", "s37")
        else:
            L.append(f"s_add_u32 s38, s33, {(c[1]*256 + c[2]*32)*896}")
            L += dma(VO, SO, "s38", "s37")
        vm.issue(j, 4)
        issued[0] += 1
        return L

    for _ in range(3):
        for ln in issue_chunk(): A(ln)
    read_addrs(A, RA, 1)
    for k in range(4):
        A(f"v_add_u32 v{RA+k}, s36, v{RA+k}")
    A("v_lshrrev_b32 v1, 5, v0")
    A("v_lshlrev_b32 v1, 10, v1")
    A("v_bfe_u32 v2, v0, 2, 2")
    A("v_lshlrev_b32 v3, 7, v2")
    A("v_add_u32 v1, v1, v3")
    A("v_lshrrev_b32 v2, 1, v2")
    A("v_lshlrev_b32 v2, 6, v2")
    A("v_add_u32 v1, v1, v2")
    A("v_bfe_u32 v2, v0, 4, 1")
    A("v_lshlrev_b32 v2, 5, v2")
    A("v_add_u32 v1, v1, v2")
    A("v_and_b32 v2, 3, v0")
    A("v_lshlrev_b32 v2, 3, v2")
    A("v_add_u32 v1, v1, v2")
    A(f"v_xor_b32 v{RT+1}, 64, v1")
    A(f"v_add_u32 v{RT}, s36, v1")
    A(f"v_add_u32 v{RT+1}, s36, v{RT+1}")
    A("v_lshlrev_b32 v1, 4, v0")
    for hh in range(4):
        for tp in range(2):
            d = PF + hh * 8 + tp * 4
            if hh == 2 and tp == 0:
                A("s_add_u32 s34, s34, 4096")
            off = (hh & 1) * 2048 + tp * 1024
            A(f"buffer_load_dwordx4 v[{d}:{d+3}], v1, s[{SWS}:{SWS+3}], s34 offen offset:{off}")
    vm.issue("P", 8)
    for _ in range(3 * LAP - 3):
        for ln in issue_chunk(): A(ln)

    def reads(n):
        j = 3 * n
        L = []
        aset, bset = AS[n & 1], BS[n & 1]
        for k in range(4):
            L.append(f"ds_read_b128 v[{aset+4*k}:{aset+4*k+3}], v{RA+k} offset:{(j % NS)*4096}")
            slot = (j + 1 + (k >> 1)) % NS
            for ct in range(2):
                for u in range(2):
                    d = bset + (k * 2 + ct) * 4 + u * 2
                    L.append(f"ds_read_b64_tr_b16 v[{d}:{d+1}], v{RT+ct} offset:{slot*4096 + (k&1)*2048 + u*512}")
        return L

    def fmfma(hh):
        L = []
        for tp in range(2):
            for ct in range(2):
                vb = VB + ct * 8 + tp * 4
                pf = PF + hh * 8 + tp * 4
                c = "0" if (hh == 0 and tp == 0) else f"a[{16*ct}:{16*ct+15}]"
                L.append(f"{MF} a[{16*ct}:{16*ct+15}], v[{vb}:{vb+3}], v[{pf}:{pf+3}], {c}")
        return L

    A(f"s_waitcnt vmcnt({vm.wait(2)})")
    for ln in reads(0): A(ln)
    for n in range(16):
        hh, q = n // 4, n % 4
        aset, bset, acc = AS[n & 1], BS[n & 1], ACC[hh & 1]
        A("s_waitcnt lgkmcnt(0)")
        mf = []
        for k in range(4):
            for ct in range(2):
                bf = bset + (k * 2 + ct) * 4
                c = "0" if (q == 0 and k == 0) else f"v[{acc+16*ct}:{acc+16*ct+15}]"
                mf.append(f"{MF} v[{acc+16*ct}:{acc+16*ct+15}], v[{aset+4*k}:{aset+4*k+3}], v[{bf}:{bf+3}], {c}")
        fill = []
        while issued[0] < min(3 * (n + 1 + LAP), len(stream)):
            assert issued[0] < 3 * (n + 1) + NS
            fill += issue_chunk()
        n_dma = len(fill)
        if n + 1 < 16:
            fill.append(f"s_waitcnt vmcnt({vm.wait(3*(n+1)+2)})")
            fill += reads(n + 1)
        extra = []
        if hh > 0 and q == 1:
            pacc = ACC[(hh - 1) & 1]
            for i in range(16):
                extra.append(f"v_cvt_pk_bf16_f32 v{VB+i}, v{pacc+2*i}, v{pacc+2*i+1}")
        if hh > 0 and q == 2:
            mf += fmfma(hh - 1)
        after = [n_dma, 6, 5, 5, 5, 6, 6, 6] + [0] * 8
        interleave(A, mf, fill + extra, after)
    pacc = ACC[1]
    A("s_nop 11")
    for i in range(16):
        A(f"v_cvt_pk_bf16_f32 v{VB+i}, v{pacc+2*i}, v{pacc+2*i+1}")
    A("s_nop 1")
    for ln in fmfma(3): A(ln)
    A("v_add_u32 v2, s36, v1")
    A("s_lshl_b32 s3, s24, 11")
    A("v_add_u32 v3, s3, v1")
    A("v_add_u32 v4, 81920, v3")
    A("v_and_b32 v5, 31, v0")
    A("v_mul_u32_u24 v5, 896, v5")
    A("v_lshrrev_b32 v6, 5, v0")
    A("v_lshlrev_b32 v6, 4, v6")
    A("v_add_u32 v5, v5, v6")
    A("s_mul_i32 s3, s26, 28672")
    A("s_lshl_b32 s37, s25, 7")
    A("s_add_u32 s3, s3, s37")
    A("s_lshl_b32 s37, s24, 5")
    A("s_add_u32 s3, s3, s37")
    A("s_nop 2")
    for i in range(8):
        A(f"ds_write_b128 v2, a[{4*i}:{4*i+3}] offset:{i*1024}")
    A("s_waitcnt lgkmcnt(0)")
    A("s_barrier")
    T = 52
    for w in range(4):
        for i in range(2):
            base = "v3" if w < 2 else "v4"
            A(f"ds_read_b128 v[{T+8*w+4*i}:{T+8*w+4*i+3}], {base} offset:{(w&1)*40960+i*1024}")
    A("s_waitcnt lgkmcnt(4)")
    for i in range(8):
        A(f"v_add_f32 v{T+i}, v{T+i}, v{T+8+i}")
    A("s_waitcnt lgkmcnt(0)")
    for i in range(8):
        A(f"v_add_f32 v{T+16+i}, v{T+16+i}, v{T+24+i}")
    for i in range(8):
        A(f"v_add_f32 v{T+i}, v{T+i}, v{T+16+i}")
    for i in range(4):
        A(f"v_cvt_pk_bf16_f32 v{T+8+i}, v{T+2*i}, v{T+2*i+1}")
    A("s_nop 1")
    A(f"v_permlane32_swap_b32 v{T+8}, v{T+10}")
    A(f"v_permlane32_swap_b32 v{T+9}, v{T+11}")
    A("s_nop 1")
    A(f"buffer_store_dwordx4 v[{T+8}:{T+11}], v5, s[{SOUT}:{SOUT+3}], s3 offen")
    A.label("p2_end")
    A("s_endpgm")


def main(out):
    A = Asm()
    A.raw(HEADER.rstrip())
    A.raw("; @launch kernel=mha_p1_kernel grid=(256,1,1) block=(256,1,1) lds=163840")
    A.raw("; @launch kernel=mha_p2_kernel grid=(224,1,1) block=(256,1,1) lds=163840")
    A.raw('.amdgcn_target "amdgcn-amd-amdhsa--gfx950"')
    A.raw(".text")
    kernel_open(A, "mha_p1_kernel")
    phase1(A)
    kernel_open(A, "mha_p2_kernel")
    phase2(A)
    A.raw('.section .rodata,"a"')
    A.raw(".p2align 6")
    A.raw(descriptor("mha_p1_kernel", 328, 200, 48))
    A.raw(".p2align 6")
    A.raw(descriptor("mha_p2_kernel", 260, 228, 48))
    open(out, "w").write(A.text())


if __name__ == "__main__":
    main(sys.argv[1] if len(sys.argv) > 1 else f"cdna_kernels/{NAME}.s")
```

```python
import gen1, re
from common import *
gen1.main("base.s")
src = open("base.s").read()
p1, p2 = src.split("mha_p2_kernel:")
def nt(txt, srds):
    out = []
    for ln in txt.split("\n"):
        if "lds" in ln and "buffer_load" in ln and any(f"s[{r}:{r+3}]" in ln for r in srds):
            ln = ln.replace(" lds", " nt lds")
        out.append(ln)
    return "\n".join(out)
open("a.s", "w").write(nt(p1, [12, 16]) + "mha_p2_kernel:" + nt(p2, [8, 12]))
open("b.s", "w").write(nt(p1, [12]) + "mha_p2_kernel:" + nt(p2, [8]))
open("c.s", "w").write(nt(p1, [12, 16]) + "mha_p2_kernel:" + nt(p2, [8]))
open("d.s", "w").write(nt(p1, [12, 16, 8]) + "mha_p2_kernel:" + nt(p2, [8]))
```

```python
import gen1, os
from common import *
STO = 48 << 20
def probe(A, nt, first_only=False):
    A("s_cmp_ge_u32 s2, 256")
    A("s_cbranch_scc1 pr_end")
    A("s_memrealtime s[40:41]")
    A("s_load_dwordx4 s[4:7], s[0:1], 0")
    A("s_load_dwordx4 s[28:31], s[0:1], 16")
    A("s_load_dwordx2 s[32:33], s[0:1], 32")
    A("s_load_dwordx2 s[38:39], s[0:1], 56")
    A("v_lshlrev_b32 v1, 4, v0")
    A("s_waitcnt lgkmcnt(0)")
    A("s_memrealtime s[46:47]")
    srd(A, 8, 4, SZ_X); srd(A, 12, 6, SZ_KV); srd(A, 16, 28, SZ_KV); srd(A, 20, 30, SZ_W); srd(A, 24, 32, SZ_W); srd(A, 48, 38, 64 << 20)
    A("s_lshl_b32 s3, s2, 15")
    A("s_mul_i32 s34, s2, 14336")
    A("s_mul_i32 s35, s2, 3584")
    r = 4
    p = " nt" if nt else ""
    n = 0
    for sr in (12, 16):
        for i in range(8):
            A(f"s_add_u32 s36, s3, {i*4096}")
            A(f"buffer_load_dwordx4 v[{r}:{r+3}], v1, s[{sr}:{sr+3}], s36 offen{p}"); r += 4; n += 1
    for sr in (20, 24):
        for i in range(4):
            A(f"s_add_u32 s36, s34, {i*4096}")
            A(f"buffer_load_dwordx4 v[{r}:{r+3}], v1, s[{sr}:{sr+3}], s36 offen{p}"); r += 4; n += 1
    A(f"buffer_load_dwordx4 v[{r}:{r+3}], v1, s[8:11], s35 offen{p}"); n += 1
    A(f"s_waitcnt vmcnt({n-1})")
    A("s_memrealtime s[44:45]")
    A("s_waitcnt vmcnt(0)")
    A("s_barrier")
    A("s_memrealtime s[42:43]")
    A("s_waitcnt lgkmcnt(0)")
    A("v_mov_b32 v4, s40"); A("v_mov_b32 v5, s42"); A("v_mov_b32 v6, s44"); A("v_mov_b32 v7, s46")
    A("s_lshl_b32 s3, s2, 4")
    A(f"s_add_u32 s3, s3, {STO}")
    A("v_mov_b32 v1, 0")
    A("buffer_store_dwordx4 v[4:7], v1, s[48:51], s3 offen")
    A.label("pr_end")
    A("s_endpgm")
def amp(A, what, F):
    A("s_cmp_ge_u32 s2, 1")
    A("s_cbranch_scc1 am_end")
    A("s_memrealtime s[40:41]")
    A("s_load_dwordx2 s[38:39], s[0:1], 56")
    A("v_lshlrev_b32 v1, 4, v0")
    A("s_waitcnt lgkmcnt(0)")
    srd(A, 48, 38, 64 << 20)
    A(f"s_mov_b32 s3, {STO}")
    for i in range(4):
        A(f"buffer_load_dwordx4 v[{4+4*i}:{7+4*i}], v1, s[48:51], s3 offen offset:{1024*i}")
    A("s_waitcnt vmcnt(0)")
    for i in range(16):
        A(f"v_sub_u32 v{4+i}, s40, v{4+i}")
    for c in range(4):
        A(f"v_max_u32 v{20+c}, v{4+c}, v{8+c}"); A(f"v_max3_u32 v{20+c}, v{20+c}, v{12+c}, v{16+c}")
        A(f"v_min_u32 v{24+c}, v{4+c}, v{8+c}"); A(f"v_min3_u32 v{24+c}, v{24+c}, v{12+c}, v{16+c}")
    for c in range(4):
        A(f"s_mov_b32 s{10+c}, 0"); A(f"s_mov_b32 s{14+c}, -1")
    A("s_mov_b32 s20, 0")
    A.label("am_l")
    for c in range(4):
        A(f"v_readlane_b32 s21, v{20+c}, s20"); A(f"v_readlane_b32 s22, v{24+c}, s20")
        A("s_nop 3")
        A(f"s_max_u32 s{10+c}, s{10+c}, s21"); A(f"s_min_u32 s{14+c}, s{14+c}, s22")
    A("s_add_u32 s20, s20, 1"); A("s_cmp_lt_u32 s20, 64"); A("s_cbranch_scc1 am_l")
    if what == "span": A("s_sub_u32 s23, s10, s15")
    if what == "all": A("s_mov_b32 s23, s10")
    if what == "skew": A("s_sub_u32 s23, s10, s14")
    if what == "first": A("s_sub_u32 s23, s10, s12")
    if what == "firstmax": A("s_sub_u32 s23, s10, s16")
    if what == "karg": A("s_sub_u32 s23, s10, s13")
    A(f"s_mul_i32 s23, s23, {F}")
    A("s_min_u32 s23, s23, 200000")
    A.label("am_s")
    A("s_memrealtime s[42:43]")
    A("s_waitcnt lgkmcnt(0)")
    A("s_sub_u32 s24, s42, s40")
    A("s_cmp_lt_u32 s24, s23")
    A("s_cbranch_scc1 am_s")
    A.label("am_end")
    A("s_endpgm")
def mk(out, nt, what, F):
    A = Asm()
    A.raw(HEADER.rstrip())
    A.raw("; @launch kernel=probe_kernel grid=(256,1,1) block=(256,1,1) lds=0")
    A.raw("; @launch kernel=mha_p1_kernel grid=(256,1,1) block=(256,1,1) lds=163840")
    A.raw("; @launch kernel=mha_p2_kernel grid=(224,1,1) block=(256,1,1) lds=163840")
    A.raw("; @launch kernel=amp_kernel grid=(1,1,1) block=(64,1,1) lds=0")
    A.raw('.amdgcn_target "amdgcn-amd-amdhsa--gfx950"')
    A.raw(".text")
    kernel_open(A, "mha_p1_kernel"); gen1.phase1(A)
    kernel_open(A, "mha_p2_kernel"); gen1.phase2(A)
    kernel_open(A, "probe_kernel"); probe(A, nt)
    kernel_open(A, "amp_kernel"); amp(A, what, F)
    A.raw('.section .rodata,"a"')
    A.raw(".p2align 6"); A.raw(descriptor("mha_p1_kernel", 328, 200, 48))
    A.raw(".p2align 6"); A.raw(descriptor("mha_p2_kernel", 260, 228, 48))
    A.raw(".p2align 6"); A.raw(descriptor("probe_kernel", 128, 128, 64))
    A.raw(".p2align 6"); A.raw(descriptor("amp_kernel", 32, 32, 64))
    open(out, "w").write(A.text())
mk("a.s", 0, "span", 0)
mk("b.s", 0, "span", 10)
mk("c.s", 1, "span", 10)
mk("d.s", 0, "all", 10)
mk("e.s", 0, "skew", 10)
mk("f.s", 0, "first", 10)
mk("g.s", 0, "firstmax", 10)
mk("h.s", 0, "karg", 10)
mk("i.s", 1, "span", 0)
```

```python
import sys
from common import *
STAMP = 32 << 20
def amp(A, k, wv, stat, F, nwg=224):
    A("s_cmp_ge_u32 s2, 1")
    A("s_cbranch_scc1 am_end")
    A("s_memrealtime s[40:41]")
    A("s_load_dwordx2 s[38:39], s[0:1], 56")
    A("v_lshlrev_b32 v1, 10, v0")
    A("s_waitcnt lgkmcnt(0)")
    srd(A, 48, 38, 64 << 20)
    for i in range(4):
        A(f"s_mov_b32 s3, {STAMP + i*65536 + wv*128}")
        A(f"buffer_load_dword v{4+i}, v1, s[48:51], s3 offen")
        A(f"buffer_load_dword v{8+i}, v1, s[48:51], s3 offen offset:{8*k}")
    A("s_waitcnt vmcnt(0)")
    for i in range(8):
        A(f"v_sub_u32 v{4+i}, s40, v{4+i}")
    A("v_cmp_gt_u32 vcc, 32, v0")
    A("s_nop 1")
    A("v_cndmask_b32 v11, v10, v11, vcc")
    A("v_max_u32 v4, v4, v5"); A("v_max3_u32 v4, v4, v6, v7")
    A("v_min_u32 v12, v8, v9"); A("v_min3_u32 v12, v12, v10, v11")
    A("v_add_u32 v13, v8, v9"); A("v_add3_u32 v13, v13, v10, v11")
    A("s_mov_b32 s10, 0"); A("s_mov_b32 s11, -1"); A("s_mov_b32 s12, 0"); A("s_mov_b32 s20, 0")
    A.label("am_l")
    A("v_readlane_b32 s21, v4, s20"); A("v_readlane_b32 s22, v12, s20"); A("v_readlane_b32 s23, v13, s20")
    A("s_nop 0")
    A("s_max_u32 s10, s10, s21"); A("s_min_u32 s11, s11, s22"); A("s_add_u32 s12, s12, s23")
    A("s_add_u32 s20, s20, 1"); A("s_cmp_lt_u32 s20, 64"); A("s_cbranch_scc1 am_l")
    if stat == "max":
        A("s_sub_u32 s23, s10, s11"); A(f"s_mul_i32 s23, s23, {F}")
    elif stat == "avg":
        A("s_lshl_b32 s10, s10, 8"); A("s_sub_u32 s23, s10, s12"); A(f"s_mul_i32 s23, s23, {F}"); A("s_lshr_b32 s23, s23, 8")
    elif stat == "all":
        A(f"s_mul_i32 s23, s10, {F}")
    A("s_min_u32 s23, s23, 200000")
    A.label("am_s")
    A("s_memrealtime s[42:43]")
    A("s_waitcnt lgkmcnt(0)")
    A("s_sub_u32 s24, s42, s40")
    A("s_cmp_lt_u32 s24, s23")
    A("s_cbranch_scc1 am_s")
    A.label("am_end")
    A("s_endpgm")
def wrap(src, out, k, wv, stat, F):
    t = open(src).read()
    K = NAME + "_kernel"
    lines = t.split("\n")
    i = [n for n, l in enumerate(lines) if l.startswith("; @launch")][0]
    lines[i] = lines[i].replace("; @launch ", f"; @launch kernel={K} ") + "\n; @launch kernel=amp_kernel grid=(1,1,1) block=(64,1,1) lds=0"
    t = "\n".join(lines)
    A = Asm(); kernel_open(A, "amp_kernel"); amp(A, k, wv, stat, F)
    t = t.replace('.section .rodata,"a"', A.text() + '.section .rodata,"a"')
    t += ".p2align 6\n" + descriptor("amp_kernel", 32, 32, 64)
    open(out, "w").write(t)
if __name__ == "__main__":
    src = sys.argv[1]
    for n, spec in enumerate(sys.argv[2:]):
        k, wv, stat, F = spec.split(",")
        wrap(src, f"amp{n}.s", int(k), int(wv), stat, int(F))
```
